```python
import torch

def _softmax(x, axis=-1):
    return torch.softmax(x, dim=axis)

def _gelu(x):
    return torch.nn.functional.gelu(x, approximate='tanh')

def _silu(x):
    return torch.nn.functional.silu(x)

def _sigmoid(x):
    return torch.sigmoid(x)

def _layernorm(x, axis=-1, eps=1e-05):
    m = x.mean(dim=axis, keepdim=True)
    v = x.var(dim=axis, keepdim=True, unbiased=False)
    return (x - m) / torch.sqrt(v + eps)

def _scatter_add(tgt, idx, src, axis=0):
    return tgt.clone().index_add_(axis, idx, src)

def _segment_sum(src, seg, n):
    out = torch.zeros((n,) + src.shape[1:], dtype=src.dtype)
    return out.index_add_(0, seg, src)

def _pad(x, pw):
    flat = tuple((v for pair in reversed(pw) for v in pair))
    return torch.nn.functional.pad(x, flat)
kernel_name = 'standalone__window_attn_twins__vision'

def setup_inputs():

    _w = lambda a: (lambda t: t.to(torch.bfloat16) if t.is_floating_point() else t)(torch.as_tensor(a))
    H = W = 384 // 8 * 8
    C = 96
    return {'x': _w((lambda *s: torch.randn(*s, dtype=torch.bfloat16) * 0.8)(1, H, W, C)), 'wq': _w((lambda *s: torch.randn(*s, dtype=torch.bfloat16) * 0.8)(C, C)), 'wkv': _w((lambda *s: torch.randn(*s, dtype=torch.bfloat16) * 0.8)(C, 2 * C)), 'wo': _w((lambda *s: torch.randn(*s, dtype=torch.bfloat16) * 0.05)(C, C))}

def reference(x, wq, wkv, wo):
    B, H, W, C = x.shape
    win = 8
    nh, nw = (H // win, W // win)
    xs = x.reshape(B, nh, win, nw, win, C).mean(axis=(2, 4)).reshape(B, nh * nw, C)
    q = x.reshape(B, H * W, C) @ wq
    kv = xs @ wkv
    k, v = (kv[..., :C].clone(), kv[..., C:].clone())
    scale = C ** (-0.5)
    p = _softmax(torch.einsum('bqc,bkc->bqk', q, k) * scale, axis=-1)
    o = torch.einsum('bqk,bkc->bqc', p, v) @ wo
    return o.reshape(B, H, W, C)
```

```python
from common import *
from sched import *

STAGE = 24576
RING = 3
MAREA = RING * STAGE
LDS_BYTES = MAREA + 4 * 5 * 1024

vA, vB, vM = 1, 2, 3
Lr = [4, 5, 6, 7, 8]
NM = [9, 10, 11, 12, 13]
vDMA = 14
vTMP = 15
T = [16, 17, 18, 19, 20, 21, 22, 23]
LS = 0
QB = 24
S = [144, 160]
P = [176, 184]
KR = 192
VR = 216
CB = 240
def Q(b, s): return QB + 24 * b + 4 * s
def O(b, d): return 48 * b + 16 * d

sW, sPAR, sQB = 16, 17, 18
sDG, sDL = 20, 21
sTHR, sTHRA, sFLA = 24, 25, 26
sCNT = 27
sT0, sT1, sT2 = 28, 29, 30

def softmax_fillers(X, Y, b):
    F = []
    def fin(k):
        a, c = T[(k % 2) * 2], T[(k % 2) * 2 + 1]
        if k == 0:
            F.append(valu(f"v_add_f32 v{LS}, v{a}, v{c}", vr(a) + vr(c), vr(LS)))
        else:
            F.append(valu(f"v_add_f32 v{LS}, v{LS}, v{a}", vr(a) + vr(LS), vr(LS)))
            F.append(valu(f"v_add_f32 v{LS}, v{LS}, v{c}", vr(c) + vr(LS), vr(LS)))
        F.append(valu(f"v_cvt_pk_bf16_f32 v{Y+k}, v{a}, v{c}", vr(a) + vr(c), vr(Y + k)))
    for k in range(8):
        a, c = T[(k % 2) * 2], T[(k % 2) * 2 + 1]
        F.append(trans(f"v_exp_f32 v{a}, v{X+2*k}", vr(X + 2 * k), vr(a)))
        F.append(trans(f"v_exp_f32 v{c}, v{X+2*k+1}", vr(X + 2 * k + 1), vr(c)))
        if k > 0:
            fin(k - 1)
    fin(7)
    return F

def slot(idx, sm, qk, pv, c_blk, kreload=None, vreload=None, pre=None, thr=None):
    b, xs, ys = sm
    qb, qs = qk
    pb, pys = pv
    mf = []
    qkl = []
    for s in range(6):
        c = CB if s == 0 else S[qs]
        m = mfma(S[qs], KR + 4 * s, Q(qb, s), c)
        post = []
        if kreload is not None:
            addr, off = kreload
            post.append(ldsr(f"ds_read_b128 v[{KR+4*s}:{KR+4*s+3}], v{addr} offset:{off + s*1024}", vr(addr), vr(KR + 4 * s, 4)))
        qkl.append((m, post))
    pvl = []
    for d in range(3):
        for t in range(2):
            m = mfma(O(pb, d), VR + 4 * (2 * d + t), P[pys] + 4 * t, O(pb, d), dk="a", ck="a")
            post = []
            if vreload is not None:
                addr, off = vreload
                f = 2 * d + t
                post.append(ldsr(f"ds_read_b128 v[{VR+4*f}:{VR+4*f+3}], v{addr} offset:{off + 6144 + f*1024}", vr(addr), vr(VR + 4 * f, 4)))
            pvl.append((m, post))
    order = []
    for i in range(6):
        order.append(qkl[i]); order.append(pvl[i])
    for j in range(4):
        order[4 + j][1].append(ldsr(f"ds_read_b128 v[{CB+4*j}:{CB+4*j+3}], v{vM} offset:{c_blk*1024}", vr(vM), vr(CB + 4 * j, 4)))
    fillers = softmax_fillers(S[xs], P[ys], b)
    thr_s = thr
    fillers.append(valu(f"v_cmp_lt_f32 vcc, s{thr_s}, v{LS}", vr(LS), []))
    fillers.append(other(f"s_cbranch_vccnz Lslow_{idx}", "br"))
    fillers.append(other(f"Lret_{idx}:", "label"))
    fillers.append(valu(f"v_add_f32 v{Lr[b]}, v{Lr[b]}, v{LS}", vr(Lr[b]) + vr(LS), vr(Lr[b])))
    tot = sum(f.cost for f in fillers) + sum(p.cost for _, ps in order for p in ps)
    per = tot / 12.0
    out = []
    if pre:
        out += pre
    fi = 0; acc = 0.0
    for k, (m, ps) in enumerate(order):
        out.append(m)
        for p in ps:
            out.append(p); acc += p.cost
        target = per * (k + 1)
        while fi < len(fillers) and (k == 11 or acc + 0.5 * fillers[fi].cost <= target):
            out.append(fillers[fi]); acc += fillers[fi].cost; fi += 1
    return out

def slow_path(idx, sm, floor_s):
    b, xs, ys = sm
    X = S[xs]; Y = P[ys]
    L = []
    a = L.append
    a(other(f"Lslow_{idx}:", "label"))
    a(other("s_nop 7", "nop"))
    t0, t1, t2, t3 = T[0], T[1], T[2], T[3]
    a(valu(f"v_max3_f32 v{t0}, v{X}, v{X+1}, v{X+2}", vr(X, 3), vr(t0)))
    for i in range(3, 15, 2):
        a(valu(f"v_max3_f32 v{t0}, v{t0}, v{X+i}, v{X+i+1}", vr(t0) + vr(X + i, 2), vr(t0)))
    a(valu(f"v_max_f32 v{t0}, v{t0}, v{X+15}", vr(t0) + vr(X + 15), vr(t0)))
    a(valu(f"v_mov_b32 v{t1}, v{t0}", vr(t0), vr(t1)))
    a(other("s_nop 1", "nop"))
    a(valu(f"v_permlane32_swap_b32 v{t0}, v{t1}", vr(t0) + vr(t1), vr(t0) + vr(t1)))
    a(other("s_nop 1", "nop"))
    a(valu(f"v_max_f32 v{t0}, v{t0}, v{t1}", vr(t0) + vr(t1), vr(t0)))
    a(valu(f"v_ceil_f32 v{t0}, v{t0}", vr(t0), vr(t0)))
    if floor_s is None:
        a(valu(f"v_max_f32 v{t0}, 0, v{t0}", vr(t0), vr(t0)))
    else:
        a(valu(f"v_max_f32 v{t0}, s{floor_s}, v{t0}", vr(t0), vr(t0)))
    a(valu(f"v_sub_f32 v{NM[b]}, v{NM[b]}, v{t0}", vr(NM[b]) + vr(t0), vr(NM[b])))
    for i in range(16):
        a(valu(f"v_sub_f32 v{X+i}, v{X+i}, v{t0}", vr(X + i) + vr(t0), vr(X + i)))
    a(valu(f"v_max_f32 v{t1}, 0, v{t0}", vr(t0), vr(t1)))
    a(trans(f"v_exp_f32_e64 v{t1}, -v{t1}", vr(t1), vr(t1)))
    a(other("s_nop 1", "nop"))
    a(valu(f"v_mul_f32 v{Lr[b]}, v{Lr[b]}, v{t1}", vr(Lr[b]) + vr(t1), vr(Lr[b])))
    for r in range(48):
        tt = T[2 + (r % 2)]
        a(valu(f"v_accvgpr_read_b32 v{tt}, a{O(b,0)+r}", ar(O(b, 0) + r), vr(tt)))
        a(valu(f"v_mul_f32 v{tt}, v{tt}, v{t1}", vr(tt) + vr(t1), vr(tt)))
        a(valu(f"v_accvgpr_write_b32 a{O(b,0)+r}, v{tt}", vr(tt), ar(O(b, 0) + r)))
    for j in range(4):
        a(valu(f"v_mov_b32 v{T[4+j]}, v{NM[b]}", vr(NM[b]), vr(T[4 + j])))
    a(ldsw(f"ds_write_b128 v{vM}, v[{T[4]}:{T[7]}] offset:{b*1024}", vr(vM) + vr(T[4], 4), []))
    L += softmax_fillers(X, Y, b)
    a(other("s_waitcnt lgkmcnt(0)", "waitall"))
    a(other("s_nop 1", "nop"))
    a(other(f"s_branch Lret_{idx}", "br"))
    return L

def gen_attn(opts):
    out = []
    A = out.append
    A(entry("k_attn_kernel"))
    A("  s_cmp_ge_u32 s2, 256")
    A("  s_cbranch_scc1 Lattn_end")
    A("  s_load_dwordx2 s[4:5], s[0:1], 0")
    A("  s_load_dwordx2 s[8:9], s[0:1], 48")
    A("  s_load_dwordx2 s[12:13], s[0:1], 32")
    A("  v_lshrrev_b32 v1, 6, v0")
    A("  v_and_b32 v0, 63, v0")
    A("  s_nop 1")
    A(f"  v_readfirstlane_b32 s{sW}, v1")
    A("  s_waitcnt lgkmcnt(0)")
    A(f"  s_mov_b32 s6, {X_BYTES}")
    A("  s_mov_b32 s7, 0x20000")
    A(f"  s_add_u32 s8, s8, {KV_OFF}")
    A("  s_addc_u32 s9, s9, 0")
    A(f"  s_mov_b32 s10, {KV_BYTES}")
    A("  s_mov_b32 s11, 0x20000")
    A(f"  s_mov_b32 s14, {X_BYTES}")
    A("  s_mov_b32 s15, 0x20000")
    A(f"  s_and_b32 s{sPAR}, s{sW}, 1")
    A(f"  s_mul_i32 s{sQB}, s2, 110592")
    A(f"  v_lshlrev_b32 v{vDMA}, 4, v0")
    A(f"  s_mul_i32 s{sT0}, s{sW}, 6144")
    for st in range(2):
        A(f"  s_add_u32 s{sT1}, s{sT0}, {st*STAGE}")
        A(f"  s_mov_b32 m0, s{sT1}")
        A("  s_nop 0")
        for i in range(4):
            A(f"  buffer_load_dwordx4 v{vDMA}, s[8:11], s{sT1} offen offset:{i*1024} lds")
        A(f"  s_add_u32 s{sT1}, s{sT1}, 4096")
        A(f"  s_mov_b32 m0, s{sT1}")
        A("  s_nop 0")
        for i in range(2):
            A(f"  buffer_load_dwordx4 v{vDMA}, s[8:11], s{sT1} offen offset:{i*1024} lds")
    A(f"  s_add_u32 s{sDG}, s{sT0}, {2*STAGE}")
    A(f"  s_add_u32 s{sDL}, s{sT0}, {2*STAGE}")
    A(f"  v_and_b32 v{vTMP}, 31, v0")
    A(f"  v_mul_u32_u24 v{vTMP}, 192, v{vTMP}")
    A(f"  v_lshrrev_b32 v1, 5, v0")
    A(f"  v_lshl_add_u32 v{vTMP}, v1, 4, v{vTMP}")
    for b in range(5):
        if b < 4:
            A(f"  s_lshl_b32 s{sT1}, s{sW}, 2")
            A(f"  s_add_u32 s{sT1}, s{sT1}, {b}")
        else:
            A(f"  s_lshr_b32 s{sT1}, s{sW}, 1")
            A(f"  s_add_u32 s{sT1}, s{sT1}, 16")
        A(f"  s_mul_i32 s{sT1}, s{sT1}, 6144")
        A(f"  s_add_u32 s{sT1}, s{sT1}, s{sQB}")
        for s in range(6):
            A(f"  buffer_load_dwordx4 v[{Q(b,s)}:{Q(b,s)+3}], v{vTMP}, s[4:7], s{sT1} offen offset:{s*32}")
    for r in range(240):
        A(f"  v_accvgpr_write_b32 a{r}, 0")
    for r in list(range(P[0], P[0] + 16)) + list(range(VR, VR + 24)) + list(range(CB, CB + 16)) + Lr + NM:
        A(f"  v_mov_b32 v{r}, 0")
    A(f"  s_mul_i32 s{sT1}, s{sPAR}, 12288")
    A(f"  v_add_u32 v{vA}, s{sT1}, v{vDMA}")
    A(f"  s_sub_u32 s{sT1}, 12288, s{sT1}")
    A(f"  v_add_u32 v{vB}, s{sT1}, v{vDMA}")
    A(f"  s_mul_i32 s{sT1}, s{sW}, 5120")
    A(f"  s_add_u32 s{sT1}, s{sT1}, {MAREA}")
    A(f"  v_add_u32 v{vM}, s{sT1}, v{vDMA}")
    for b in range(5):
        A(f"  ds_write_b128 v{vM}, v[{CB}:{CB+3}] offset:{b*1024}")
    A(f"  s_mov_b32 s{sTHR}, 0x5f800000")
    A(f"  s_mov_b32 s{sTHRA}, 0xbf800000")
    A(f"  s_mov_b32 s{sFLA}, 0xff800000")
    A(f"  s_mov_b32 s{sCNT}, 0")
    A("  s_waitcnt vmcnt(0) lgkmcnt(0)")
    A("  s_barrier")
    for s in range(6):
        A(f"  ds_read_b128 v[{KR+4*s}:{KR+4*s+3}], v{vA} offset:{s*1024}")
    A("  s_waitcnt lgkmcnt(0)")
    for s in range(6):
        c = CB if s == 0 else S[0]
        A("  " + mfma(S[0], KR + 4 * s, Q(0, s), c).t)
    A("  s_nop 15")
    A("  s_nop 15")

    body = []
    slows = []
    idx = 0
    n = 0
    def barrier_pre():
        pr = []
        pr.append(other("s_waitcnt vmcnt(0)", "other"))
        pr.append(other("s_barrier", "other"))
        pr.append(salu(f"s_mov_b32 m0, s{sDL}"))
        pr.append(salu(f"s_add_u32 s{sT1}, s{sDG}, 4096"))
        for i in range(4):
            pr.append(other(f"buffer_load_dwordx4 v{vDMA}, s[8:11], s{sDG} offen offset:{i*1024} lds", "vmem", vr(vDMA)))
        pr.append(salu(f"s_add_u32 s{sT2}, s{sDL}, 4096"))
        pr.append(salu(f"s_mov_b32 m0, s{sT2}"))
        pr.append(salu(f"s_add_u32 s{sDG}, s{sDG}, {STAGE}"))
        for i in range(2):
            pr.append(other(f"buffer_load_dwordx4 v{vDMA}, s[8:11], s{sT1} offen offset:{i*1024} lds", "vmem", vr(vDMA)))
        pr.append(salu(f"s_add_u32 s{sDL}, s{sDL}, {STAGE}"))
        pr.append(salu(f"s_cmp_ge_u32 s{sDL}, {MAREA}"))
        pr.append(salu(f"s_cselect_b32 s{sT2}, {MAREA}, 0"))
        pr.append(salu(f"s_sub_u32 s{sDL}, s{sDL}, s{sT2}"))
        pr.append(salu(f"s_add_u32 s{sT0}, s{sT0}, {STAGE}"))
        pr.append(salu(f"s_cmp_ge_u32 s{sT0}, {MAREA}"))
        pr.append(salu(f"s_cselect_b32 s{sT2}, {MAREA}, 0"))
        pr.append(salu(f"s_sub_u32 s{sT0}, s{sT0}, s{sT2}"))
        pr.append(salu(f"s_sub_u32 s{sT2}, {STAGE}, s{sT2}"))
        pr.append(valu(f"v_add_u32 v{vA}, s{sT2}, v{vA}", vr(vA), vr(vA)))
        pr.append(valu(f"v_add_u32 v{vB}, s{sT2}, v{vB}", vr(vB), vr(vB)))
        return pr

    for stage in range(2):
        tbl = [
            ("A", 0, 1, 3, 2, None, "VA"),
            ("A", 1, 2, 0, 3, None, None),
            ("A", 2, 3, 1, 4, None, None),
            ("A", 3, 4, 2, 0, "KB", None),
            ("A", 4, 0, 3, 1, None, None),
            ("B", 0, 1, 4, 2, None, "VB"),
            ("B", 1, 2, 0, 3, None, None),
            ("B", 2, 3, 1, 0, "KA", None),
            ("B", 3, 0, 2, 1, None, None),
        ]
        for (tile, b, qb, pb, cb, kr, vrl) in tbl:
            xs = n % 2; ys = n % 2
            qs = (n + 1) % 2; pys = (n + 1) % 2
            kre = {"KB": (vB, 0), "KA": (vA, 0), None: None}[kr]
            vre = {"VA": (vA, 0), "VB": (vB, 0), None: None}[vrl]
            pre = barrier_pre() if kr == "KA" else None
            thr = sTHRA if tile == "A" else sTHR
            sl = slot(idx, (b, xs, ys), (qb, qs), (pb, pys), cb, kre, vre, pre, thr)
            if tile == "B" and b == 0:
                sl.insert(0, salu(f"s_mov_b32 s{sTHRA}, s{sTHR}"))
                sl.insert(0, salu(f"s_mov_b32 s{sFLA}, 0"))
            body += sl
            slows += fix_hazards(slow_path(idx, (b, xs, ys), sFLA if tile == "A" else None), [])
            idx += 1
            n += 1
    body.append(salu(f"s_add_u32 s{sCNT}, s{sCNT}, 1"))
    body.append(salu(f"s_cmp_lt_u32 s{sCNT}, 18"))
    body.append(other("s_cbranch_scc1 Lloop", "br"))
    b1, carry = insert_lgkm(body, [])
    b2, carry2 = insert_lgkm(body, carry)
    b2 = fix_hazards(b2, b1[-40:])
    A(f"  s_mov_b32 s{sT0}, 0")
    A("  s_waitcnt lgkmcnt(0)")
    A("Lloop:")
    out += text(b2)
    last_ys = (n - 1) % 2
    A("  s_waitcnt lgkmcnt(0)")
    A("  s_nop 7")
    for d in range(3):
        for t in range(2):
            A("  " + mfma(O(3, d), VR + 4 * (2 * d + t), P[last_ys] + 4 * t, O(3, d), dk="a", ck="a").t)
    A("  s_nop 15")
    A("  s_nop 15")
    SC = S[0]
    A(f"  v_lshrrev_b32 v0, 4, v{vDMA}")
    A(f"  v_and_b32 v{vTMP}, 31, v0")
    A(f"  v_mul_u32_u24 v{vTMP}, 192, v{vTMP}")
    A(f"  v_lshrrev_b32 v1, 5, v0")
    A(f"  v_lshl_add_u32 v{vTMP}, v1, 3, v{vTMP}")
    def finalize(b, lreg, src_is_agpr=True, obase=None):
        A(f"  v_mov_b32 v{T[1]}, v{lreg}")
        A(f"  v_mov_b32 v{T[0]}, v{lreg}")
        A("  s_nop 1")
        A(f"  v_permlane32_swap_b32 v{T[0]}, v{T[1]}")
        A("  s_nop 1")
        A(f"  v_add_f32 v{T[0]}, v{T[0]}, v{T[1]}")
        A(f"  v_rcp_f32 v{T[0]}, v{T[0]}")
        A("  s_nop 1")
        for d in range(3):
            for g in range(4):
                regs = []
                for e in range(4):
                    r = 16 * d + 4 * g + e
                    dst = SC + r
                    if src_is_agpr:
                        A(f"  v_accvgpr_read_b32 v{dst}, a{O(b,0)+r}")
                        A("  s_nop 0")
                        A(f"  v_mul_f32 v{dst}, v{dst}, v{T[0]}")
                    else:
                        A(f"  v_mul_f32 v{dst}, v{obase+r}, v{T[0]}")
                A("  s_nop 0")
                A(f"  v_cvt_pk_bf16_f32 v{SC+48+2*g}, v{SC+16*d+4*g}, v{SC+16*d+4*g+1}")
                A(f"  v_cvt_pk_bf16_f32 v{SC+49+2*g}, v{SC+16*d+4*g+2}, v{SC+16*d+4*g+3}")
                A(f"  buffer_store_dwordx2 v[{SC+48+2*g}:{SC+49+2*g}], v{vTMP}, s[12:15], s{sT1} offen offset:{64*d+16*g}")
            A("  s_waitcnt vmcnt(0)")
    for b in range(4):
        A(f"  s_lshl_b32 s{sT1}, s{sW}, 2")
        A(f"  s_add_u32 s{sT1}, s{sT1}, {b}")
        A(f"  s_mul_i32 s{sT1}, s{sT1}, 6144")
        A(f"  s_add_u32 s{sT1}, s{sT1}, s{sQB}")
        finalize(b, Lr[b])
    b = 4
    OV = SC + 64
    for r in range(48):
        A(f"  v_accvgpr_read_b32 v{OV+r}, a{O(b,0)+r}")
    A(f"  s_lshr_b32 s{sT1}, s{sW}, 1")
    A(f"  s_mul_i32 s{sT1}, s{sT1}, 16384")
    A(f"  v_add_u32 v{T[2]}, s{sT1}, v{vDMA}")
    A("  s_barrier")
    A(f"  s_cmp_eq_u32 s{sPAR}, 0")
    A("  s_cbranch_scc1 Lmerge_even")
    for qd in range(12):
        A(f"  ds_write_b128 v{T[2]}, v[{OV+4*qd}:{OV+4*qd+3}] offset:{qd*1024}")
    A(f"  v_mov_b32 v{T[4]}, v{Lr[b]}")
    A(f"  v_mov_b32 v{T[5]}, v{NM[b]}")
    A(f"  v_mov_b32 v{T[6]}, 0")
    A(f"  v_mov_b32 v{T[7]}, 0")
    A(f"  ds_write_b128 v{T[2]}, v[{T[4]}:{T[7]}] offset:{12*1024}")
    A("  s_waitcnt lgkmcnt(0)")
    A("  s_barrier")
    A("  s_branch Lattn_end")
    A("Lmerge_even:")
    A("  s_barrier")
    PV_ = SC
    for qd in range(12):
        A(f"  ds_read_b128 v[{PV_+4*qd}:{PV_+4*qd+3}], v{T[2]} offset:{qd*1024}")
    A(f"  ds_read_b128 v[{T[4]}:{T[7]}], v{T[2]} offset:{12*1024}")
    A("  s_waitcnt lgkmcnt(0)")
    A(f"  v_min_f32 v{T[6]}, v{NM[b]}, v{T[5]}")
    A(f"  v_sub_f32 v{T[0]}, v{T[6]}, v{NM[b]}")
    A(f"  v_sub_f32 v{T[1]}, v{T[6]}, v{T[5]}")
    A(f"  v_exp_f32 v{T[0]}, v{T[0]}")
    A(f"  v_exp_f32 v{T[1]}, v{T[1]}")
    A("  s_nop 1")
    for r in range(48):
        A(f"  v_mul_f32 v{OV+r}, v{OV+r}, v{T[0]}")
        A(f"  v_fmac_f32 v{OV+r}, v{PV_+r}, v{T[1]}")
    A(f"  v_mul_f32 v{Lr[b]}, v{Lr[b]}, v{T[0]}")
    A(f"  v_fmac_f32 v{Lr[b]}, v{T[4]}, v{T[1]}")
    A(f"  s_lshr_b32 s{sT1}, s{sW}, 1")
    A(f"  s_add_u32 s{sT1}, s{sT1}, 16")
    A(f"  s_mul_i32 s{sT1}, s{sT1}, 6144")
    A(f"  s_add_u32 s{sT1}, s{sT1}, s{sQB}")
    finalize(b, Lr[b], src_is_agpr=False, obase=OV)
    A("Lattn_end:")
    A("  s_endpgm")
    out += text(slows)
    return "\n".join(out) + kd("k_attn_kernel", vgpr=512, sgpr=40, accum=256)
```

```python
HEADER_SRC = "standalone__window_attn_twins__vision.s.ref"

XS_OFF = 0
KV_OFF = 0x100000
KV_BYTES = 72 * 12288
X_BYTES = 28311552
WS_BYTES = 268435456

def kd(name, vgpr=256, sgpr=102, accum=256):
    return f'''
.section .rodata,"a"
.p2align 6
.amdhsa_kernel {name}
  .amdhsa_next_free_vgpr {vgpr}
  .amdhsa_next_free_sgpr {sgpr}
  .amdhsa_accum_offset {accum}
  .amdhsa_group_segment_fixed_size 0
  .amdhsa_kernarg_size 56
  .amdhsa_user_sgpr_count 2
  .amdhsa_user_sgpr_kernarg_segment_ptr 1
  .amdhsa_system_sgpr_workgroup_id_x 1
.end_amdhsa_kernel
.text
'''

def entry(name):
    return f'''
.globl {name}
.p2align 8
.type {name},@function
{name}:
'''
```

```python
from common import *

def gen_pool():
    L = []
    A = L.append
    A(entry("k_pool_kernel"))
    A("  s_cmp_ge_u32 s2, 576")
    A("  s_cbranch_scc1 Lpool_end")
    A("  s_load_dwordx2 s[4:5], s[0:1], 0")
    A("  s_load_dwordx2 s[8:9], s[0:1], 48")
    A("  v_lshrrev_b32 v1, 6, v0")
    A("  v_and_b32 v2, 63, v0")
    A("  s_nop 1")
    A("  v_readfirstlane_b32 s3, v1")
    A("  s_waitcnt lgkmcnt(0)")
    A(f"  s_mov_b32 s6, {X_BYTES}")
    A("  s_mov_b32 s7, 0x20000")
    A(f"  s_mov_b32 s10, {WS_BYTES}")
    A("  s_mov_b32 s11, 0x20000")
    A("  s_lshl_b32 s12, s2, 2")
    A("  s_add_u32 s12, s12, s3")
    A("  s_mul_i32 s13, s12, 43691")
    A("  s_lshr_b32 s13, s13, 21")
    A("  s_mul_i32 s14, s13, 48")
    A("  s_sub_u32 s14, s12, s14")
    A("  s_mul_i32 s15, s13, 589824")
    A("  s_mul_i32 s16, s14, 1536")
    A("  s_add_u32 s15, s15, s16")
    A("  v_mul_u32_u24 v3, 43, v2")
    A("  v_lshrrev_b32 v3, 9, v3")
    A("  v_mul_u32_u24 v4, 12, v3")
    A("  v_sub_u32 v4, v2, v4")
    A("  v_mul_u32_u24 v5, 192, v3")
    A("  v_lshl_add_u32 v5, v4, 4, v5")
    A("  s_lshl_b32 s17, s3, 11")
    A("  v_cmp_gt_u32 vcc, 48, v2")
    A("  s_and_saveexec_b64 s[20:21], vcc")
    A("  s_cbranch_execz Lpool_end")
    reg = 16
    for r in range(8):
        if r > 0:
            A("  s_add_u32 s15, s15, 73728")
        for h in range(2):
            A(f"  buffer_load_dwordx4 v[{reg}:{reg+3}], v5, s[4:7], s15 offen offset:{h*768}")
            reg += 4
    for j in range(8):
        A(f"  v_mov_b32 v{8+j}, 0")
    A("  v_mov_b32 v6, 0xffff0000")
    for i in range(16):
        A(f"  s_waitcnt vmcnt({15-i})")
        base = 16 + 4 * i
        for d in range(4):
            A(f"  v_lshlrev_b32 v7, 16, v{base+d}")
            A(f"  v_and_b32 v{base+d}, v6, v{base+d}")
            A(f"  v_add_f32 v{8+2*d}, v{8+2*d}, v7")
            A(f"  v_add_f32 v{8+2*d+1}, v{8+2*d+1}, v{base+d}")
    A("  v_lshlrev_b32 v7, 5, v2")
    A("  v_add_u32 v7, s17, v7")
    A("  ds_write_b128 v7, v[8:11]")
    A("  ds_write_b128 v7, v[12:15] offset:16")
    A("  v_lshlrev_b32 v7, 3, v2")
    A("  v_add_u32 v7, s17, v7")
    A("  s_waitcnt lgkmcnt(0)")
    for p in range(4):
        A(f"  ds_read_b64 v[{16+2*p}:{17+2*p}], v7 offset:{p*384}")
    A("  s_waitcnt lgkmcnt(0)")
    A("  v_add_f32 v16, v16, v18")
    A("  v_add_f32 v17, v17, v19")
    A("  v_add_f32 v20, v20, v22")
    A("  v_add_f32 v21, v21, v23")
    A("  v_add_f32 v16, v16, v20")
    A("  v_add_f32 v17, v17, v21")
    A("  v_mul_f32 v16, 0x3c800000, v16")
    A("  v_mul_f32 v17, 0x3c800000, v17")
    A("  s_nop 0")
    A("  v_cvt_pk_bf16_f32 v16, v16, v17")
    A("  v_lshlrev_b32 v7, 2, v2")
    A("  s_mul_i32 s18, s12, 192")
    A(f"  s_add_u32 s18, s18, {XS_OFF}")
    A("  buffer_store_dword v16, v7, s[8:11], s18 offen")
    A("Lpool_end:")
    A("  s_endpgm")
    return "\n".join(L) + kd("k_pool_kernel", vgpr=80, sgpr=32, accum=80)
```

```python
from common import *
import struct

def gen_proj():
    L = []
    A = L.append
    A(entry("k_proj_kernel"))
    A("  s_cmp_ge_u32 s2, 144")
    A("  s_cbranch_scc1 Lproj_end")
    A("  s_load_dwordx2 s[4:5], s[0:1], 8")
    A("  s_load_dwordx2 s[8:9], s[0:1], 16")
    A("  s_load_dwordx2 s[12:13], s[0:1], 24")
    A("  s_load_dwordx2 s[16:17], s[0:1], 48")
    A("  v_and_b32 v1, 31, v0")
    A("  v_lshrrev_b32 v2, 5, v0")
    A("  s_lshr_b32 s26, s2, 1")
    A("  s_and_b32 s27, s2, 1")
    A("  s_waitcnt lgkmcnt(0)")
    for (r, n) in ((4, 18432), (8, 36864), (12, 18432), (16, WS_BYTES)):
        A(f"  s_mov_b32 s{r+2}, {n}")
        A(f"  s_mov_b32 s{r+3}, 0x20000")
    A("  v_mul_u32_u24 v3, 192, v1")
    A("  v_lshl_add_u32 v3, v2, 4, v3")
    A("  s_mul_i32 s20, s26, 6144")
    A(f"  s_add_u32 s20, s20, {XS_OFF}")
    XS = 16
    for s in range(6):
        A(f"  buffer_load_dwordx4 v[{XS+4*s}:{XS+4*s+3}], v3, s[16:19], s20 offen offset:{s*32}")
    A("  v_mul_u32_u24 v4, 3072, v2")
    A("  v_lshl_add_u32 v4, v1, 1, v4")
    A("  s_mul_i32 s28, s27, 192")
    WK = 40
    for s in range(6):
        A(f"  s_add_u32 s21, s28, {s*6144}")
        for nb in range(3):
            for j in range(8):
                idx = (nb * 6 + s) * 4 + j // 2
                dst = f"v{WK + idx}" if j % 2 == 0 else f"a{idx}"
                A(f"  buffer_load_ushort {dst}, v4, s[8:11], s21 offen offset:{j*384 + nb*64}")
    A("  s_cmp_eq_u32 s27, 1")
    A("  s_cbranch_scc1 Lproj_v")
    A("  v_mul_u32_u24 v5, 192, v1")
    A("  v_lshl_add_u32 v5, v2, 3, v5")
    WQ = 72
    for db in range(3):
        A(f"  s_mov_b32 s21, {db*6144}")
        for nb in range(3):
            for t in range(2):
                base = WQ + ((db * 3 + nb) * 2 + t) * 4
                A(f"  buffer_load_dwordx2 a[{base}:{base+1}], v5, s[4:7], s21 offen offset:{nb*64 + t*32}")
                A(f"  buffer_load_dwordx2 a[{base+2}:{base+3}], v5, s[4:7], s21 offen offset:{nb*64 + t*32 + 16}")

    def phase1():
        A("  s_waitcnt vmcnt(0)")
        for idx in range(72):
            A(f"  v_accvgpr_read_b32 v8, a{idx}")
            A("  s_nop 0")
            A(f"  v_lshl_or_b32 v{WK+idx}, v8, 16, v{WK+idx}")
        A("  s_nop 3")
        D1 = 112
        for nb in range(3):
            for s in range(6):
                a = WK + (nb * 6 + s) * 4
                c = "0" if s == 0 else f"v[{D1+16*nb}:{D1+16*nb+15}]"
                A(f"  v_mfma_f32_32x32x16_bf16 v[{D1+16*nb}:{D1+16*nb+15}], v[{a}:{a+3}], v[{XS+4*s}:{XS+4*s+3}], {c}")
        A("  s_nop 15")
        A("  s_nop 15")
        KVF = 160
        for nb in range(3):
            for t in range(2):
                for q in range(4):
                    r = D1 + 16 * nb + 8 * t + 2 * q
                    A(f"  v_cvt_pk_bf16_f32 v{KVF + (nb*2+t)*4 + q}, v{r}, v{r+1}")
        A("  s_nop 3")
        return KVF

    KVF = phase1()
    sc = (96 ** -0.5) * 1.4426950408889634
    scbits = struct.unpack("<I", struct.pack("<f", sc))[0]
    A(f"  s_mov_b32 s24, 0x{scbits:08x}")
    A("  v_lshlrev_b32 v7, 4, v1")
    A("  v_lshl_add_u32 v7, v2, 3, v7")
    A("  s_mul_i32 s22, s26, 12288")
    A(f"  s_add_u32 s22, s22, {KV_OFF}")
    A("  s_add_u32 s23, s22, 4096")
    D = 192
    for db in range(3):
        first = True
        for nb in range(3):
            for t in range(2):
                a = WQ + ((db * 3 + nb) * 2 + t) * 4
                b = KVF + (nb * 2 + t) * 4
                c = "0" if first else f"v[{D}:{D+15}]"
                A(f"  v_mfma_f32_32x32x16_bf16 v[{D}:{D+15}], a[{a}:{a+3}], v[{b}:{b+3}], {c}")
                first = False
        A("  s_nop 15")
        A("  s_nop 15")
        for g in range(4):
            for e in range(4):
                A(f"  v_mul_f32 v{D+4*g+e}, s24, v{D+4*g+e}")
            A("  s_nop 0")
            A(f"  v_cvt_pk_bf16_f32 v{8+2*g}, v{D+4*g}, v{D+4*g+1}")
            A(f"  v_cvt_pk_bf16_f32 v{9+2*g}, v{D+4*g+2}, v{D+4*g+3}")
            off = (2 * db + (g >> 1)) * 1024 + (g & 1) * 512
            so = "s22"
            if off >= 4096:
                so = "s23"; off -= 4096
            A(f"  buffer_store_dwordx2 v[{8+2*g}:{9+2*g}], v7, s[16:19], {so} offen offset:{off}")
        A("  s_waitcnt vmcnt(0)")
    A("  s_endpgm")
    A("Lproj_v:")
    A("  v_mul_u32_u24 v6, 768, v2")
    A("  v_lshl_add_u32 v6, v1, 1, v6")
    WOL = 184
    WOH = 72
    for nb in range(3):
        for t in range(2):
            A(f"  s_mov_b32 s21, {nb*6144 + t*3072}")
            for db in range(3):
                for j in range(8):
                    idx = ((db * 3 + nb) * 2 + t) * 4 + j // 2
                    dst = f"v{WOL + idx}" if j % 2 == 0 else f"a{WOH + idx}"
                    A(f"  buffer_load_ushort {dst}, v6, s[12:15], s21 offen offset:{((j&3) + 8*(j>>2))*192 + db*64}")
    KVF = phase1()
    for idx in range(72):
        A(f"  v_accvgpr_read_b32 v8, a{WOH+idx}")
        A("  s_nop 0")
        A(f"  v_lshl_or_b32 v{WOL+idx}, v8, 16, v{WOL+idx}")
    A("  v_lshlrev_b32 v7, 4, v0")
    A("  s_mul_i32 s22, s26, 12288")
    A(f"  s_add_u32 s22, s22, {KV_OFF}")
    A("  s_add_u32 s23, s22, 6144")
    A("  s_add_u32 s25, s22, 10240")
    D = 40
    for db in range(3):
        first = True
        for nb in range(3):
            for t in range(2):
                a = KVF + (nb * 2 + t) * 4
                b = WOL + ((db * 3 + nb) * 2 + t) * 4
                c = "0" if first else f"v[{D}:{D+15}]"
                A(f"  v_mfma_f32_32x32x16_bf16 v[{D}:{D+15}], v[{a}:{a+3}], v[{b}:{b+3}], {c}")
                first = False
        A("  s_nop 15")
        A("  s_nop 15")
        for t in range(2):
            for q in range(4):
                A(f"  v_cvt_pk_bf16_f32 v{8+4*t+q}, v{D+8*t+2*q}, v{D+8*t+2*q+1}")
            off = (2 * db + t) * 1024
            so = "s23"
            if off >= 4096:
                so = "s25"; off -= 4096
            A(f"  buffer_store_dwordx4 v[{8+4*t}:{11+4*t}], v7, s[16:19], {so} offen offset:{off}")
        A("  s_waitcnt vmcnt(0)")
    A("Lproj_end:")
    A("  s_endpgm")
    return "\n".join(L) + kd("k_proj_kernel", vgpr=400, sgpr=32, accum=256)
```

```python
import re

class I:
    __slots__ = ("t", "k", "rd", "wr", "cost", "tag")
    def __init__(self, t, k, rd=(), wr=(), cost=4.3, tag=None):
        self.t, self.k, self.rd, self.wr, self.cost, self.tag = t, k, frozenset(rd), frozenset(wr), cost, tag
    def __repr__(self):
        return self.t

def vr(a, n=1):
    return [("v", a + i) for i in range(n)]
def ar(a, n=1):
    return [("a", a + i) for i in range(n)]

def mfma(d, a, b, c, dk="v", ak="v", bk="v", ck="v"):
    f = lambda k, x, n: f"{k}[{x}:{x+n-1}]"
    cs = "0" if c is None else f(ck, c, 16)
    t = f"v_mfma_f32_32x32x16_bf16 {f(dk,d,16)}, {f(ak,a,4)}, {f(bk,b,4)}, {cs}"
    rd = [(ak, a + i) for i in range(4)] + [(bk, b + i) for i in range(4)]
    if c is not None:
        rd += [(ck, c + i) for i in range(16)]
    i = I(t, "mfma", rd, [(dk, d + i) for i in range(16)], cost=8.0)
    i.tag = ("C", ck, c)
    return i

def valu(t, rd=(), wr=(), cost=4.3):
    return I(t, "valu", rd, wr, cost)
TRANS_COST = [8.7]
def trans(t, rd=(), wr=()):
    return I(t, "trans", rd, wr, TRANS_COST[0])
def ldsr(t, rd=(), wr=()):
    return I(t, "ldsr", rd, wr, 4.3)
def ldsw(t, rd=(), wr=()):
    return I(t, "ldsw", rd, wr, 4.3)
def salu(t):
    return I(t, "salu", cost=0.0)
def other(t, k="other", rd=(), wr=()):
    return I(t, k, rd, wr, cost=0.0)

def insert_lgkm(seq, carry):
    out = []
    q = list(carry)
    for ins in seq:
        if ins.k not in ("label",):
            need = -1
            regs = ins.rd | ins.wr
            for idx, dst in enumerate(q):
                if dst & regs:
                    need = idx
            if need >= 0:
                n_after = len(q) - 1 - need
                out.append(other(f"s_waitcnt lgkmcnt({min(n_after, 15)})", "wait"))
                q = q[need + 1:]
        out.append(ins)
        if ins.k == "ldsr":
            q.append(frozenset(ins.wr))
        elif ins.k == "ldsw":
            q.append(frozenset())
        elif ins.k == "waitall":
            q = []
    return out, q

def fix_hazards(seq, tail):
    out = list(tail)
    base = len(out)
    def lookback_need(ins):
        need = 0
        cnt = 0
        for p in reversed(out):
            if cnt > 24:
                break
            if p.k in ("label",):
                continue
            req = 0
            if p.k in ("valu", "trans") and ins.k == "mfma" and (p.wr & ins.rd):
                req = 2
            if p.k == "mfma" and (p.wr & (ins.rd | ins.wr)):
                if ins.k == "mfma":
                    exact = ins.tag is not None and len(p.wr & ins.rd) > 0 and \
                        frozenset((ins.tag[1], ins.tag[2] + i) for i in range(16)) == p.wr if ins.tag[2] is not None else False
                    ab = frozenset(list(ins.rd)[:0])
                    if exact and not (p.wr & (ins.rd - frozenset((ins.tag[1], ins.tag[2] + i) for i in range(16)))):
                        req = 0
                    else:
                        req = 12
                else:
                    req = 12
            if p.k == "mfma" and ins.k in ("valu", "trans", "ldsr") and p.tag is not None and p.tag[2] is not None:
                cset = frozenset((p.tag[1], p.tag[2] + i) for i in range(16))
                if cset & ins.wr:
                    req = max(req, 7)
            if p.k == "trans" and ins.k in ("valu", "trans", "mfma") and (p.wr & ins.rd):
                req = max(req, 1)
            if p.k in ("valu", "trans") and ins.t.startswith("v_permlane") and (p.wr & (ins.rd | ins.wr)):
                req = max(req, 2)
            if p.k in ("valu", "trans") and ins.t.startswith("v_readfirstlane") and (p.wr & ins.rd):
                req = max(req, 1)
            if req > cnt:
                need = max(need, req - cnt)
            m = re.match(r"s_nop (\d+)", p.t)
            cnt += (int(m.group(1)) + 1) if m else 1
        return need
    for ins in seq:
        if ins.k != "label":
            n = lookback_need(ins)
            while n > 0:
                k = min(n, 16)
                out.append(other(f"s_nop {k-1}", "nop"))
                n -= k
        out.append(ins)
    return out[base:]

def fill_gaps(mf, fillers, gap_budget=24.0):
    tot = sum(f.cost for f in fillers)
    per = tot / len(mf) if mf else tot
    out = []
    fi = 0
    acc = 0.0
    for k, m in enumerate(mf):
        out.append(m)
        target = per * (k + 1)
        while fi < len(fillers) and (acc + fillers[fi].cost * 0.5 <= target or k == len(mf) - 1):
            out.append(fillers[fi]); acc += fillers[fi].cost; fi += 1
    return out

def text(seq):
    lines = []
    for i in seq:
        if i.k == "label":
            lines.append(i.t)
        else:
            lines.append("  " + i.t)
    return lines
```

```python
import sys, importlib
sys.path.insert(0, "gen")
from common import *
import pool, proj, attn

def build(out, opts):
    hdr = [l.rstrip("\n") for l in open(HEADER_SRC) if l.startswith(";")]
    hdr = [l for l in hdr if "@launch" not in l]
    lines = list(hdr)
    kernels = opts.get("kernels", "pool,proj,attn").split(",")
    if "pool" in kernels:
        lines.append("; @launch kernel=k_pool_kernel grid=(576,1,1) block=(256,1,1) lds=8192")
    if "proj" in kernels:
        lines.append("; @launch kernel=k_proj_kernel grid=(144,1,1) block=(64,1,1) lds=0")
    if "attn" in kernels:
        lines.append(f"; @launch kernel=k_attn_kernel grid=(256,1,1) block=(256,1,1) lds={attn.LDS_BYTES}")
    lines.append('.amdgcn_target "amdgcn-amd-amdhsa--gfx950"')
    lines.append(".text")
    if "pool" in kernels: lines.append(pool.gen_pool())
    if "proj" in kernels: lines.append(proj.gen_proj())
    if "attn" in kernels: lines.append(attn.gen_attn(opts))
    open(out, "w").write("\n".join(lines) + "\n")

if __name__ == "__main__":
    out = sys.argv[1]
    opts = dict(a.split("=", 1) for a in sys.argv[2:])
    build(out, opts)
```

```python
from common import *
from sched import *

STAGE = 24576
RING = 3
MAREA = RING * STAGE
LDS_BYTES = MAREA + 4 * 5 * 1024

vA, vB, vM = 1, 2, 3
Lr = [4, 5, 6, 7, 8]
NM = [9, 10, 11, 12, 13]
vDMA = 14
vTMP = 15
T = [16, 17, 18, 19, 20, 21, 22, 23]
LS = 0
QB = 24
S = [144, 160]
P = [176, 184]
KR = 192
VR = 216
CB = 240
def Q(b, s): return QB + 24 * b + 4 * s
def O(b, d): return 48 * b + 16 * d

sW, sPAR, sQB = 16, 17, 18
sDG, sDL = 20, 21
sTHR, sTHRA, sFLA = 24, 25, 26
sCNT = 27
sT0, sT1, sT2 = 28, 29, 30

EXP = {}
def softmax_fillers(X, Y, b):
    F = []
    if EXP.get("nosm"):
        return F
    def fin(k):
        a, c = T[(k % 2) * 2], T[(k % 2) * 2 + 1]
        if k == 0:
            F.append(valu(f"v_add_f32 v{LS}, v{a}, v{c}", vr(a) + vr(c), vr(LS)))
        else:
            F.append(valu(f"v_add_f32 v{LS}, v{LS}, v{a}", vr(a) + vr(LS), vr(LS)))
            F.append(valu(f"v_add_f32 v{LS}, v{LS}, v{c}", vr(c) + vr(LS), vr(LS)))
        F.append(valu(f"v_cvt_pk_bf16_f32 v{Y+k}, v{a}, v{c}", vr(a) + vr(c), vr(Y + k)))
    for k in range(8):
        a, c = T[(k % 2) * 2], T[(k % 2) * 2 + 1]
        F.append(trans(f"v_exp_f32 v{a}, v{X+2*k}", vr(X + 2 * k), vr(a)))
        F.append(trans(f"v_exp_f32 v{c}, v{X+2*k+1}", vr(X + 2 * k + 1), vr(c)))
        if k > 0:
            fin(k - 1)
    fin(7)
    return F

def slot(idx, sm, qk, pv, c_blk, kreload=None, vreload=None, pre=None, thr=None, dma=()):
    b, xs, ys = sm
    qb, qs = qk
    pb, pys = pv
    mf = []
    qkl = []
    for s in range(6):
        c = CB if s == 0 else S[qs]
        m = mfma(S[qs], KR + 4 * s, Q(qb, s), c)
        post = []
        if kreload is not None:
            addr, off = kreload
            post.append(ldsr(f"ds_read_b128 v[{KR+4*s}:{KR+4*s+3}], v{addr} offset:{off + s*1024}", vr(addr), vr(KR + 4 * s, 4)))
        qkl.append((m, post))
    pvl = []
    for d in range(3):
        for t in range(2):
            m = mfma(O(pb, d), VR + 4 * (2 * d + t), P[pys] + 4 * t, O(pb, d), dk="a", ck="a")
            post = []
            if vreload is not None:
                addr, off = vreload
                f = 2 * d + t
                post.append(ldsr(f"ds_read_b128 v[{VR+4*f}:{VR+4*f+3}], v{addr} offset:{off + 6144 + f*1024}", vr(addr), vr(VR + 4 * f, 4)))
            pvl.append((m, post))
    order = []
    for i in range(6):
        order.append(qkl[i]); order.append(pvl[i])
    for j in range(4 if not EXP.get("nocref") else 0):
        order[4 + j][1].append(ldsr(f"ds_read_b128 v[{CB+4*j}:{CB+4*j+3}], v{vM} offset:{c_blk*1024}", vr(vM), vr(CB + 4 * j, 4)))
    for n_, i in enumerate(dma):
        pos = 1 + 2 * n_
        order[pos][1].append(salu(f"s_add_u32 m0, s{sDL}, {(i//4)*4096}"))
        order[pos][1].append(salu(f"s_add_u32 s{sT1}, s{sDG}, {(i//4)*4096}"))
        order[pos][1].append(other(f"buffer_load_dwordx4 v{vDMA}, s[8:11], s{sT1} offen offset:{(i%4)*1024} lds", "vmem", vr(vDMA)))
        if i == 5:
            order[pos][1].append(salu(f"s_add_u32 s{sDG}, s{sDG}, {STAGE}"))
            order[pos][1].append(salu(f"s_add_u32 s{sDL}, s{sDL}, {STAGE}"))
            order[pos][1].append(salu(f"s_cmp_ge_u32 s{sDL}, {MAREA}"))
            order[pos][1].append(salu(f"s_cselect_b32 s{sT1}, {MAREA}, 0"))
            order[pos][1].append(salu(f"s_sub_u32 s{sDL}, s{sDL}, s{sT1}"))
    fillers = softmax_fillers(S[xs], P[ys], b)
    thr_s = thr
    fillers.append(valu(f"v_cmp_lt_f32 vcc, s{thr_s}, v{LS}", vr(LS), []))
    fillers.append(other(f"s_cbranch_vccnz Lslow_{idx}", "br"))
    fillers.append(other(f"Lret_{idx}:", "label"))
    fillers.append(valu(f"v_add_f32 v{Lr[b]}, v{Lr[b]}, v{LS}", vr(Lr[b]) + vr(LS), vr(Lr[b])))
    tot = sum(f.cost for f in fillers) + sum(p.cost for _, ps in order for p in ps)
    per = tot / 12.0
    out = []
    if pre:
        out += pre
    fi = 0; acc = 0.0
    for k, (m, ps) in enumerate(order):
        out.append(m)
        for p in ps:
            out.append(p); acc += p.cost
        target = per * (k + 1)
        while fi < len(fillers) and (k == 11 or acc + 0.5 * fillers[fi].cost <= target):
            out.append(fillers[fi]); acc += fillers[fi].cost; fi += 1
    return out

def slow_path(idx, sm, floor_s):
    b, xs, ys = sm
    X = S[xs]; Y = P[ys]
    L = []
    a = L.append
    a(other(f"Lslow_{idx}:", "label"))
    a(other("s_nop 7", "nop"))
    t0, t1, t2, t3 = T[0], T[1], T[2], T[3]
    a(valu(f"v_max3_f32 v{t0}, v{X}, v{X+1}, v{X+2}", vr(X, 3), vr(t0)))
    for i in range(3, 15, 2):
        a(valu(f"v_max3_f32 v{t0}, v{t0}, v{X+i}, v{X+i+1}", vr(t0) + vr(X + i, 2), vr(t0)))
    a(valu(f"v_max_f32 v{t0}, v{t0}, v{X+15}", vr(t0) + vr(X + 15), vr(t0)))
    a(valu(f"v_mov_b32 v{t1}, v{t0}", vr(t0), vr(t1)))
    a(other("s_nop 1", "nop"))
    a(valu(f"v_permlane32_swap_b32 v{t0}, v{t1}", vr(t0) + vr(t1), vr(t0) + vr(t1)))
    a(other("s_nop 1", "nop"))
    a(valu(f"v_max_f32 v{t0}, v{t0}, v{t1}", vr(t0) + vr(t1), vr(t0)))
    a(valu(f"v_ceil_f32 v{t0}, v{t0}", vr(t0), vr(t0)))
    if floor_s is None:
        a(valu(f"v_max_f32 v{t0}, 0, v{t0}", vr(t0), vr(t0)))
    else:
        a(valu(f"v_max_f32 v{t0}, s{floor_s}, v{t0}", vr(t0), vr(t0)))
    a(valu(f"v_sub_f32 v{NM[b]}, v{NM[b]}, v{t0}", vr(NM[b]) + vr(t0), vr(NM[b])))
    for i in range(16):
        a(valu(f"v_sub_f32 v{X+i}, v{X+i}, v{t0}", vr(X + i) + vr(t0), vr(X + i)))
    a(valu(f"v_max_f32 v{t1}, 0, v{t0}", vr(t0), vr(t1)))
    a(trans(f"v_exp_f32_e64 v{t1}, -v{t1}", vr(t1), vr(t1)))
    a(other("s_nop 1", "nop"))
    a(valu(f"v_mul_f32 v{Lr[b]}, v{Lr[b]}, v{t1}", vr(Lr[b]) + vr(t1), vr(Lr[b])))
    for r in range(48):
        tt = T[2 + (r % 2)]
        a(valu(f"v_accvgpr_read_b32 v{tt}, a{O(b,0)+r}", ar(O(b, 0) + r), vr(tt)))
        a(valu(f"v_mul_f32 v{tt}, v{tt}, v{t1}", vr(tt) + vr(t1), vr(tt)))
        a(valu(f"v_accvgpr_write_b32 a{O(b,0)+r}, v{tt}", vr(tt), ar(O(b, 0) + r)))
    for j in range(4):
        a(valu(f"v_mov_b32 v{T[4+j]}, v{NM[b]}", vr(NM[b]), vr(T[4 + j])))
    a(ldsw(f"ds_write_b128 v{vM}, v[{T[4]}:{T[7]}] offset:{b*1024}", vr(vM) + vr(T[4], 4), []))
    L += softmax_fillers(X, Y, b)
    a(other("s_waitcnt lgkmcnt(0)", "waitall"))
    a(other("s_nop 1", "nop"))
    a(other(f"s_branch Lret_{idx}", "br"))
    return L

def gen_attn(opts):
    EXP.update(opts)
    out = []
    A = out.append
    A(entry("k_attn_kernel"))
    A("  s_cmp_ge_u32 s2, 256")
    A("  s_cbranch_scc1 Lattn_exit")
    if opts.get("prof"):
        A("  s_memtime s[44:45]")
    A("  s_load_dwordx2 s[4:5], s[0:1], 0")
    A("  s_load_dwordx2 s[8:9], s[0:1], 48")
    A("  s_load_dwordx2 s[12:13], s[0:1], 32")
    A("  v_lshrrev_b32 v1, 6, v0")
    A("  v_and_b32 v0, 63, v0")
    A("  s_nop 1")
    A(f"  v_readfirstlane_b32 s{sW}, v1")
    A("  s_waitcnt lgkmcnt(0)")
    A(f"  s_mov_b32 s6, {X_BYTES}")
    A("  s_mov_b32 s7, 0x20000")
    A(f"  s_add_u32 s8, s8, {KV_OFF}")
    A("  s_addc_u32 s9, s9, 0")
    A(f"  s_mov_b32 s10, {KV_BYTES}")
    A("  s_mov_b32 s11, 0x20000")
    A(f"  s_mov_b32 s14, {X_BYTES}")
    A("  s_mov_b32 s15, 0x20000")
    A(f"  s_and_b32 s{sPAR}, s{sW}, 1")
    A(f"  s_mul_i32 s{sQB}, s2, 110592")
    A(f"  v_lshlrev_b32 v{vDMA}, 4, v0")
    A(f"  s_mul_i32 s{sT0}, s{sW}, 6144")
    for st in range(2):
        A(f"  s_add_u32 s{sT1}, s{sT0}, {st*STAGE}")
        A(f"  s_mov_b32 m0, s{sT1}")
        A("  s_nop 0")
        for i in range(4):
            A(f"  buffer_load_dwordx4 v{vDMA}, s[8:11], s{sT1} offen offset:{i*1024} lds")
        A(f"  s_add_u32 s{sT1}, s{sT1}, 4096")
        A(f"  s_mov_b32 m0, s{sT1}")
        A("  s_nop 0")
        for i in range(2):
            A(f"  buffer_load_dwordx4 v{vDMA}, s[8:11], s{sT1} offen offset:{i*1024} lds")
    A(f"  s_add_u32 s{sDG}, s{sT0}, {2*STAGE}")
    A(f"  s_add_u32 s{sDL}, s{sT0}, {2*STAGE}")
    A(f"  v_and_b32 v{vTMP}, 31, v0")
    A(f"  v_mul_u32_u24 v{vTMP}, 192, v{vTMP}")
    A(f"  v_lshrrev_b32 v1, 5, v0")
    A(f"  v_lshl_add_u32 v{vTMP}, v1, 4, v{vTMP}")
    for b in range(5):
        if b < 4:
            A(f"  s_lshl_b32 s{sT1}, s{sW}, 2")
            A(f"  s_add_u32 s{sT1}, s{sT1}, {b}")
        else:
            A(f"  s_lshr_b32 s{sT1}, s{sW}, 1")
            A(f"  s_add_u32 s{sT1}, s{sT1}, 16")
        A(f"  s_mul_i32 s{sT1}, s{sT1}, 6144")
        A(f"  s_add_u32 s{sT1}, s{sT1}, s{sQB}")
        for s in range(6):
            A(f"  buffer_load_dwordx4 v[{Q(b,s)}:{Q(b,s)+3}], v{vTMP}, s[4:7], s{sT1} offen offset:{s*32}")
    for r in range(240):
        A(f"  v_accvgpr_write_b32 a{r}, 0")
    for r in list(range(P[0], P[0] + 16)) + list(range(VR, VR + 24)) + list(range(CB, CB + 16)) + Lr + NM:
        A(f"  v_mov_b32 v{r}, 0")
    A(f"  s_mul_i32 s{sT1}, s{sPAR}, 12288")
    A(f"  v_add_u32 v{vA}, s{sT1}, v{vDMA}")
    A(f"  s_sub_u32 s{sT1}, 12288, s{sT1}")
    A(f"  v_add_u32 v{vB}, s{sT1}, v{vDMA}")
    A(f"  s_mul_i32 s{sT1}, s{sW}, 5120")
    A(f"  s_add_u32 s{sT1}, s{sT1}, {MAREA}")
    A(f"  v_add_u32 v{vM}, s{sT1}, v{vDMA}")
    for b in range(5):
        A(f"  ds_write_b128 v{vM}, v[{CB}:{CB+3}] offset:{b*1024}")
    A(f"  s_mov_b32 s{sTHR}, 0x5f800000")
    A(f"  s_mov_b32 s{sTHRA}, 0xbf800000")
    A(f"  s_mov_b32 s{sFLA}, 0xff800000")
    A(f"  s_mov_b32 s{sCNT}, 0")
    A("  s_waitcnt vmcnt(0) lgkmcnt(0)")
    A("  s_barrier")
    for s in range(6):
        A(f"  ds_read_b128 v[{KR+4*s}:{KR+4*s+3}], v{vA} offset:{s*1024}")
    A("  s_waitcnt lgkmcnt(0)")
    for s in range(6):
        c = CB if s == 0 else S[0]
        A("  " + mfma(S[0], KR + 4 * s, Q(0, s), c).t)
    A("  s_nop 15")
    A("  s_nop 15")

    body = []
    slows = []
    idx = 0
    n = 0
    def barrier_pre():
        pr = []
        pr.append(other("s_waitcnt vmcnt(0)", "other"))
        pr.append(other("s_barrier", "other"))
        pr.append(salu(f"s_add_u32 s{sT0}, s{sT0}, {STAGE}"))
        pr.append(salu(f"s_cmp_ge_u32 s{sT0}, {MAREA}"))
        pr.append(salu(f"s_cselect_b32 s{sT2}, {MAREA}, 0"))
        pr.append(salu(f"s_sub_u32 s{sT0}, s{sT0}, s{sT2}"))
        pr.append(salu(f"s_sub_u32 s{sT2}, {STAGE}, s{sT2}"))
        pr.append(valu(f"v_add_u32 v{vA}, s{sT2}, v{vA}", vr(vA), vr(vA)))
        pr.append(valu(f"v_add_u32 v{vB}, s{sT2}, v{vB}", vr(vB), vr(vB)))
        return pr

    for stage in range(2):
        tbl = [
            ("A", 0, 1, 3, 2, None, "VA"),
            ("A", 1, 2, 0, 3, None, None),
            ("A", 2, 3, 1, 4, None, None),
            ("A", 3, 4, 2, 0, "KB", None),
            ("A", 4, 0, 3, 1, None, None),
            ("B", 0, 1, 4, 2, None, "VB"),
            ("B", 1, 2, 0, 3, None, None),
            ("B", 2, 3, 1, 0, "KA", None),
            ("B", 3, 0, 2, 1, None, None),
        ]
        for (tile, b, qb, pb, cb, kr, vrl) in tbl:
            xs = n % 2; ys = n % 2
            qs = (n + 1) % 2; pys = (n + 1) % 2
            kre = {"KB": (vB, 0), "KA": (vA, 0), None: None}[kr]
            vre = {"VA": (vA, 0), "VB": (vB, 0), None: None}[vrl]
            pre = barrier_pre() if kr == "KA" else None
            if EXP.get("nokv"):
                kre = vre = None
            if EXP.get("nobar"):
                pre = None
            thr = sTHRA if tile == "A" else sTHR
            dma = {("B", 2): (0, 1, 2), ("B", 3): (3, 4, 5)}.get((tile, b), ())
            if EXP.get("nobar"):
                dma = ()
            sl = slot(idx, (b, xs, ys), (qb, qs), (pb, pys), cb, kre, vre, pre, thr, dma)
            if tile == "B" and b == 0:
                sl.insert(0, salu(f"s_mov_b32 s{sTHRA}, s{sTHR}"))
                sl.insert(0, salu(f"s_mov_b32 s{sFLA}, 0"))
            body += sl
            slows += fix_hazards(slow_path(idx, (b, xs, ys), sFLA if tile == "A" else None), [])
            idx += 1
            n += 1
    body.append(salu(f"s_add_u32 s{sCNT}, s{sCNT}, 1"))
    body.append(salu(f"s_cmp_lt_u32 s{sCNT}, 18"))
    body.append(other("s_cbranch_scc1 Lloop", "br"))
    b1, carry = insert_lgkm(body, [])
    b2, carry2 = insert_lgkm(body, carry)
    b2 = fix_hazards(b2, b1[-40:])
    A(f"  s_mov_b32 s{sT0}, 0")
    A("  s_waitcnt lgkmcnt(0)")
    if opts.get("prof"):
        A("  s_memtime s[36:37]")
        A("  s_waitcnt lgkmcnt(0)")
    A("Lloop:")
    out += text(b2)
    if opts.get("prof"):
        A("  s_memtime s[38:39]")
        A("  s_load_dwordx2 s[40:41], s[0:1], 40")
        A("  s_waitcnt lgkmcnt(0)")
        A("  s_mov_b32 s42, 256")
        A("  s_mov_b32 s43, 0x20000")
        A("  s_sub_u32 s38, s38, s36")
        A("  s_sub_u32 s39, s36, s44")
    last_ys = (n - 1) % 2
    A("  s_waitcnt lgkmcnt(0)")
    A("  s_nop 7")
    for d in range(3):
        for t in range(2):
            A("  " + mfma(O(3, d), VR + 4 * (2 * d + t), P[last_ys] + 4 * t, O(3, d), dk="a", ck="a").t)
    A("  s_nop 15")
    A("  s_nop 15")
    SC = S[0]
    A(f"  v_lshrrev_b32 v0, 4, v{vDMA}")
    A(f"  v_and_b32 v{vTMP}, 31, v0")
    A(f"  v_mul_u32_u24 v{vTMP}, 192, v{vTMP}")
    A(f"  v_lshrrev_b32 v1, 5, v0")
    A(f"  v_lshl_add_u32 v{vTMP}, v1, 4, v{vTMP}")
    def finalize(b, lreg, src_is_agpr=True, obase=None, tmpbase=None):
        A(f"  v_mov_b32 v{T[1]}, v{lreg}")
        A(f"  v_mov_b32 v{T[0]}, v{lreg}")
        A("  s_nop 1")
        A(f"  v_permlane32_swap_b32 v{T[0]}, v{T[1]}")
        A("  s_nop 1")
        A(f"  v_add_f32 v{T[0]}, v{T[0]}, v{T[1]}")
        A(f"  v_rcp_f32 v{T[0]}, v{T[0]}")
        A("  s_nop 1")
        tb = tmpbase
        for d in range(3):
            for gp in range(2):
                k = (d * 2 + gp) * 4
                for gg in range(2):
                    g = 2 * gp + gg
                    for e in range(4):
                        r = 16 * d + 4 * g + e
                        dst = T[2 + e]
                        if src_is_agpr:
                            A(f"  v_accvgpr_read_b32 v{dst}, a{O(b,0)+r}")
                        else:
                            A(f"  v_mov_b32 v{dst}, v{obase+r}")
                    for e in range(4):
                        A(f"  v_mul_f32 v{T[2+e]}, v{T[2+e]}, v{T[0]}")
                    A(f"  v_cvt_pk_bf16_f32 v{tb+k+2*gg}, v{T[2]}, v{T[3]}")
                    A(f"  v_cvt_pk_bf16_f32 v{tb+k+2*gg+1}, v{T[4]}, v{T[5]}")
                A("  s_nop 1")
                A(f"  v_permlane32_swap_b32 v{tb+k}, v{tb+k+2}")
                A(f"  v_permlane32_swap_b32 v{tb+k+1}, v{tb+k+3}")
                A(f"  buffer_store_dwordx4 v[{tb+k}:{tb+k+3}], v{vTMP}, s[12:15], s{sT1} offen offset:{64*d+32*gp}")
    for b in range(4):
        A(f"  s_lshl_b32 s{sT1}, s{sW}, 2")
        A(f"  s_add_u32 s{sT1}, s{sT1}, {b}")
        A(f"  s_mul_i32 s{sT1}, s{sT1}, 6144")
        A(f"  s_add_u32 s{sT1}, s{sT1}, s{sQB}")
        finalize(b, Lr[b], tmpbase=QB + 24 * b)
    b = 4
    OV = SC + 64
    for r in range(48):
        A(f"  v_accvgpr_read_b32 v{OV+r}, a{O(b,0)+r}")
    A(f"  s_lshr_b32 s{sT1}, s{sW}, 1")
    A(f"  s_mul_i32 s{sT1}, s{sT1}, 16384")
    A(f"  v_add_u32 v{T[2]}, s{sT1}, v{vDMA}")
    A("  s_barrier")
    A(f"  s_cmp_eq_u32 s{sPAR}, 0")
    A("  s_cbranch_scc1 Lmerge_even")
    for qd in range(12):
        A(f"  ds_write_b128 v{T[2]}, v[{OV+4*qd}:{OV+4*qd+3}] offset:{qd*1024}")
    A(f"  v_mov_b32 v{T[4]}, v{Lr[b]}")
    A(f"  v_mov_b32 v{T[5]}, v{NM[b]}")
    A(f"  v_mov_b32 v{T[6]}, 0")
    A(f"  v_mov_b32 v{T[7]}, 0")
    A(f"  ds_write_b128 v{T[2]}, v[{T[4]}:{T[7]}] offset:{12*1024}")
    A("  s_waitcnt lgkmcnt(0)")
    A("  s_barrier")
    A("  s_branch Lattn_end")
    A("Lmerge_even:")
    A("  s_barrier")
    PV_ = SC
    for qd in range(12):
        A(f"  ds_read_b128 v[{PV_+4*qd}:{PV_+4*qd+3}], v{T[2]} offset:{qd*1024}")
    A(f"  ds_read_b128 v[{T[4]}:{T[7]}], v{T[2]} offset:{12*1024}")
    A("  s_waitcnt lgkmcnt(0)")
    A(f"  v_min_f32 v{T[6]}, v{NM[b]}, v{T[5]}")
    A(f"  v_sub_f32 v{T[0]}, v{T[6]}, v{NM[b]}")
    A(f"  v_sub_f32 v{T[1]}, v{T[6]}, v{T[5]}")
    A(f"  v_exp_f32 v{T[0]}, v{T[0]}")
    A(f"  v_exp_f32 v{T[1]}, v{T[1]}")
    A("  s_nop 1")
    for r in range(48):
        A(f"  v_mul_f32 v{OV+r}, v{OV+r}, v{T[0]}")
        A(f"  v_fmac_f32 v{OV+r}, v{PV_+r}, v{T[1]}")
    A(f"  v_mul_f32 v{Lr[b]}, v{Lr[b]}, v{T[0]}")
    A(f"  v_fmac_f32 v{Lr[b]}, v{T[4]}, v{T[1]}")
    A(f"  s_lshr_b32 s{sT1}, s{sW}, 1")
    A(f"  s_add_u32 s{sT1}, s{sT1}, 16")
    A(f"  s_mul_i32 s{sT1}, s{sT1}, 6144")
    A(f"  s_add_u32 s{sT1}, s{sT1}, s{sQB}")
    finalize(b, Lr[b], src_is_agpr=False, obase=OV, tmpbase=QB + 96)
    A("Lattn_end:")
    if opts.get("prof"):
        A("  s_cmp_ge_u32 s2, 1")
        A("  s_cbranch_scc1 Lnoprof")
        A("  s_memtime s[46:47]")
        A("  s_waitcnt lgkmcnt(0)")
        A("  s_sub_u32 s46, s46, s44")
        A(f"  v_mov_b32 v{T[0]}, s38")
        A(f"  v_mov_b32 v{T[1]}, s39")
        A(f"  v_mov_b32 v{T[2]}, s46")
        A(f"  v_mov_b32 v{T[3]}, s{sW}")
        A(f"  v_lshlrev_b32 v{T[3]}, 4, v{T[3]}")
        A(f"  buffer_store_dwordx4 v[{T[0]}:{T[3]}], v{T[3]}, s[40:43], 0 offen")
        A("Lnoprof:")
    A("Lattn_exit:")
    A("  s_endpgm")
    out += text(slows)
    return "\n".join(out) + kd("k_attn_kernel", vgpr=512, sgpr=48, accum=256)
```

```python
from common import *
from sched import *

STAGE = 24576
RING = 3
MAREA = RING * STAGE
LDS_BYTES = MAREA + 4 * 5 * 1024

vA, vB, vM = 1, 2, 3
Lr = [4, 5, 6, 7, 8]
NM = [9, 10, 11, 12, 13]
vDMA = 14
vTMP = 15
T = [16, 17, 18, 19, 20, 21, 22, 23]
LS = 0
QB = 24
S = [144, 160]
P = [176, 184]
KR = 192
VR = 216
CB = 240
def Q(b, s): return QB + 24 * b + 4 * s
def O(b, d): return 48 * b + 16 * d

sW, sPAR, sQB = 16, 17, 18
sDG, sDL = 20, 21
sTHR, sTHRA, sFLA = 24, 25, 26
sCNT = 27
sT0, sT1, sT2 = 28, 29, 30

EXP = {}
def softmax_fillers(X, Y, b):
    F = []
    if EXP.get("nosm"):
        return F
    def fin(k):
        a, c = T[(k % 2) * 2], T[(k % 2) * 2 + 1]
        if EXP.get("pk"):
            l0 = T[6]
            if k == 0:
                F.append(valu(f"v_pk_add_f32 v[{l0}:{l0+1}], v[{a}:{c}], 0", vr(a) + vr(c), vr(l0, 2)))
            else:
                F.append(valu(f"v_pk_add_f32 v[{l0}:{l0+1}], v[{l0}:{l0+1}], v[{a}:{c}]", vr(a) + vr(c) + vr(l0, 2), vr(l0, 2)))
            if k == 7:
                F.append(valu(f"v_add_f32 v{LS}, v{l0}, v{l0+1}", vr(l0, 2), vr(LS)))
        elif k == 0:
            F.append(valu(f"v_add_f32 v{LS}, v{a}, v{c}", vr(a) + vr(c), vr(LS)))
        else:
            F.append(valu(f"v_add_f32 v{LS}, v{LS}, v{a}", vr(a) + vr(LS), vr(LS)))
            F.append(valu(f"v_add_f32 v{LS}, v{LS}, v{c}", vr(c) + vr(LS), vr(LS)))
        F.append(valu(f"v_cvt_pk_bf16_f32 v{Y+k}, v{a}, v{c}", vr(a) + vr(c), vr(Y + k)))
    for k in range(8):
        a, c = T[(k % 2) * 2], T[(k % 2) * 2 + 1]
        F.append(trans(f"v_exp_f32 v{a}, v{X+2*k}", vr(X + 2 * k), vr(a)))
        F.append(trans(f"v_exp_f32 v{c}, v{X+2*k+1}", vr(X + 2 * k + 1), vr(c)))
        if k > 0:
            fin(k - 1)
    fin(7)
    return F

def slot(idx, sm, qk, pv, c_blk, kreload=None, vreload=None, pre=None, thr=None, dma=()):
    b, xs, ys = sm
    qb, qs = qk
    pb, pys = pv
    mf = []
    qkl = []
    for s in range(6):
        c = CB if s == 0 else S[qs]
        m = mfma(S[qs], KR + 4 * s, Q(qb, s), c)
        post = []
        if kreload is not None:
            addr, off = kreload
            post.append(ldsr(f"ds_read_b128 v[{KR+4*s}:{KR+4*s+3}], v{addr} offset:{off + s*1024}", vr(addr), vr(KR + 4 * s, 4)))
        qkl.append((m, post))
    pvl = []
    for d in range(3):
        for t in range(2):
            m = mfma(O(pb, d), VR + 4 * (2 * d + t), P[pys] + 4 * t, O(pb, d), dk="a", ck="a")
            post = []
            if vreload is not None:
                addr, off = vreload
                f = 2 * d + t
                post.append(ldsr(f"ds_read_b128 v[{VR+4*f}:{VR+4*f+3}], v{addr} offset:{off + 6144 + f*1024}", vr(addr), vr(VR + 4 * f, 4)))
            pvl.append((m, post))
    order = []
    for i in range(6):
        order.append(qkl[i]); order.append(pvl[i])
    for j in range(4 if not EXP.get("nocref") else 0):
        order[4 + j][1].append(ldsr(f"ds_read_b128 v[{CB+4*j}:{CB+4*j+3}], v{vM} offset:{c_blk*1024}", vr(vM), vr(CB + 4 * j, 4)))
    for n_, i in enumerate(dma):
        pos = 1 + 2 * n_
        order[pos][1].append(salu(f"s_add_u32 m0, s{sDL}, {(i//4)*4096}"))
        order[pos][1].append(salu(f"s_add_u32 s{sT1}, s{sDG}, {(i//4)*4096}"))
        order[pos][1].append(other(f"buffer_load_dwordx4 v{vDMA}, s[8:11], s{sT1} offen offset:{(i%4)*1024} lds", "vmem", vr(vDMA)))
        if i == 5:
            order[pos][1].append(salu(f"s_add_u32 s{sDG}, s{sDG}, {STAGE}"))
            order[pos][1].append(salu(f"s_add_u32 s{sDL}, s{sDL}, {STAGE}"))
            order[pos][1].append(salu(f"s_cmp_ge_u32 s{sDL}, {MAREA}"))
            order[pos][1].append(salu(f"s_cselect_b32 s{sT1}, {MAREA}, 0"))
            order[pos][1].append(salu(f"s_sub_u32 s{sDL}, s{sDL}, s{sT1}"))
    fillers = softmax_fillers(S[xs], P[ys], b)
    thr_s = thr
    fillers.append(valu(f"v_cmp_lt_f32 vcc, s{thr_s}, v{LS}", vr(LS), []))
    fillers.append(other(f"s_cbranch_vccnz Lslow_{idx}", "br"))
    fillers.append(other(f"Lret_{idx}:", "label"))
    fillers.append(valu(f"v_add_f32 v{Lr[b]}, v{Lr[b]}, v{LS}", vr(Lr[b]) + vr(LS), vr(Lr[b])))
    tot = sum(f.cost for f in fillers) + sum(p.cost for _, ps in order for p in ps)
    per = tot / 12.0
    out = []
    if pre:
        out += pre
    fi = 0; acc = 0.0
    for k, (m, ps) in enumerate(order):
        out.append(m)
        for p in ps:
            out.append(p); acc += p.cost
        target = per * (k + 1)
        while fi < len(fillers) and (k == 11 or acc + 0.5 * fillers[fi].cost <= target):
            out.append(fillers[fi]); acc += fillers[fi].cost; fi += 1
    return out

def slow_path(idx, sm, floor_s):
    b, xs, ys = sm
    X = S[xs]; Y = P[ys]
    L = []
    a = L.append
    a(other(f"Lslow_{idx}:", "label"))
    a(other("s_nop 7", "nop"))
    t0, t1, t2, t3 = T[0], T[1], T[2], T[3]
    a(valu(f"v_max3_f32 v{t0}, v{X}, v{X+1}, v{X+2}", vr(X, 3), vr(t0)))
    for i in range(3, 15, 2):
        a(valu(f"v_max3_f32 v{t0}, v{t0}, v{X+i}, v{X+i+1}", vr(t0) + vr(X + i, 2), vr(t0)))
    a(valu(f"v_max_f32 v{t0}, v{t0}, v{X+15}", vr(t0) + vr(X + 15), vr(t0)))
    a(valu(f"v_mov_b32 v{t1}, v{t0}", vr(t0), vr(t1)))
    a(other("s_nop 1", "nop"))
    a(valu(f"v_permlane32_swap_b32 v{t0}, v{t1}", vr(t0) + vr(t1), vr(t0) + vr(t1)))
    a(other("s_nop 1", "nop"))
    a(valu(f"v_max_f32 v{t0}, v{t0}, v{t1}", vr(t0) + vr(t1), vr(t0)))
    a(valu(f"v_ceil_f32 v{t0}, v{t0}", vr(t0), vr(t0)))
    if floor_s is None:
        a(valu(f"v_max_f32 v{t0}, 0, v{t0}", vr(t0), vr(t0)))
    else:
        a(valu(f"v_max_f32 v{t0}, s{floor_s}, v{t0}", vr(t0), vr(t0)))
    a(valu(f"v_sub_f32 v{NM[b]}, v{NM[b]}, v{t0}", vr(NM[b]) + vr(t0), vr(NM[b])))
    for i in range(16):
        a(valu(f"v_sub_f32 v{X+i}, v{X+i}, v{t0}", vr(X + i) + vr(t0), vr(X + i)))
    a(valu(f"v_max_f32 v{t1}, 0, v{t0}", vr(t0), vr(t1)))
    a(trans(f"v_exp_f32_e64 v{t1}, -v{t1}", vr(t1), vr(t1)))
    a(other("s_nop 1", "nop"))
    a(valu(f"v_mul_f32 v{Lr[b]}, v{Lr[b]}, v{t1}", vr(Lr[b]) + vr(t1), vr(Lr[b])))
    for r in range(48):
        tt = T[2 + (r % 2)]
        a(valu(f"v_accvgpr_read_b32 v{tt}, a{O(b,0)+r}", ar(O(b, 0) + r), vr(tt)))
        a(valu(f"v_mul_f32 v{tt}, v{tt}, v{t1}", vr(tt) + vr(t1), vr(tt)))
        a(valu(f"v_accvgpr_write_b32 a{O(b,0)+r}, v{tt}", vr(tt), ar(O(b, 0) + r)))
    for j in range(4):
        a(valu(f"v_mov_b32 v{T[4+j]}, v{NM[b]}", vr(NM[b]), vr(T[4 + j])))
    a(ldsw(f"ds_write_b128 v{vM}, v[{T[4]}:{T[7]}] offset:{b*1024}", vr(vM) + vr(T[4], 4), []))
    L += softmax_fillers(X, Y, b)
    a(other("s_waitcnt lgkmcnt(0)", "waitall"))
    a(other("s_nop 1", "nop"))
    a(other(f"s_branch Lret_{idx}", "br"))
    return L

def gen_attn(opts):
    EXP.update(opts)
    if opts.get("tc"):
        TRANS_COST[0] = float(opts["tc"])
    out = []
    A = out.append
    A(entry("k_attn_kernel"))
    A("  s_cmp_ge_u32 s2, 256")
    A("  s_cbranch_scc1 Lattn_exit")
    if opts.get("prof"):
        A("  s_memtime s[44:45]")
    A("  s_load_dwordx2 s[4:5], s[0:1], 0")
    A("  s_load_dwordx2 s[8:9], s[0:1], 48")
    A("  s_load_dwordx2 s[12:13], s[0:1], 32")
    A("  v_lshrrev_b32 v1, 6, v0")
    A("  v_and_b32 v0, 63, v0")
    A("  s_nop 1")
    A(f"  v_readfirstlane_b32 s{sW}, v1")
    A("  s_waitcnt lgkmcnt(0)")
    A(f"  s_mov_b32 s6, {X_BYTES}")
    A("  s_mov_b32 s7, 0x20000")
    A(f"  s_add_u32 s8, s8, {KV_OFF}")
    A("  s_addc_u32 s9, s9, 0")
    A(f"  s_mov_b32 s10, {KV_BYTES}")
    A("  s_mov_b32 s11, 0x20000")
    A(f"  s_mov_b32 s14, {X_BYTES}")
    A("  s_mov_b32 s15, 0x20000")
    A(f"  s_and_b32 s{sPAR}, s{sW}, 1")
    A(f"  s_mul_i32 s{sQB}, s2, 110592")
    A(f"  v_lshlrev_b32 v{vDMA}, 4, v0")
    A(f"  s_mul_i32 s{sT0}, s{sW}, 6144")
    for st in range(2):
        A(f"  s_add_u32 s{sT1}, s{sT0}, {st*STAGE}")
        A(f"  s_mov_b32 m0, s{sT1}")
        A("  s_nop 0")
        for i in range(4):
            A(f"  buffer_load_dwordx4 v{vDMA}, s[8:11], s{sT1} offen offset:{i*1024} lds")
        A(f"  s_add_u32 s{sT1}, s{sT1}, 4096")
        A(f"  s_mov_b32 m0, s{sT1}")
        A("  s_nop 0")
        for i in range(2):
            A(f"  buffer_load_dwordx4 v{vDMA}, s[8:11], s{sT1} offen offset:{i*1024} lds")
    A(f"  s_add_u32 s{sDG}, s{sT0}, {2*STAGE}")
    A(f"  s_add_u32 s{sDL}, s{sT0}, {2*STAGE}")
    A(f"  v_and_b32 v{vTMP}, 31, v0")
    A(f"  v_mul_u32_u24 v{vTMP}, 192, v{vTMP}")
    A(f"  v_lshrrev_b32 v1, 5, v0")
    A(f"  v_lshl_add_u32 v{vTMP}, v1, 4, v{vTMP}")
    for b in range(5):
        if b < 4:
            A(f"  s_lshl_b32 s{sT1}, s{sW}, 2")
            A(f"  s_add_u32 s{sT1}, s{sT1}, {b}")
        else:
            A(f"  s_lshr_b32 s{sT1}, s{sW}, 1")
            A(f"  s_add_u32 s{sT1}, s{sT1}, 16")
        A(f"  s_mul_i32 s{sT1}, s{sT1}, 6144")
        A(f"  s_add_u32 s{sT1}, s{sT1}, s{sQB}")
        for s in range(6):
            A(f"  buffer_load_dwordx4 v[{Q(b,s)}:{Q(b,s)+3}], v{vTMP}, s[4:7], s{sT1} offen offset:{s*32}")
    for r in range(240):
        A(f"  v_accvgpr_write_b32 a{r}, 0")
    for r in list(range(P[0], P[0] + 16)) + list(range(VR, VR + 24)) + list(range(CB, CB + 16)) + Lr + NM:
        A(f"  v_mov_b32 v{r}, 0")
    A(f"  s_mul_i32 s{sT1}, s{sPAR}, 12288")
    A(f"  v_add_u32 v{vA}, s{sT1}, v{vDMA}")
    A(f"  s_sub_u32 s{sT1}, 12288, s{sT1}")
    A(f"  v_add_u32 v{vB}, s{sT1}, v{vDMA}")
    A(f"  s_mul_i32 s{sT1}, s{sW}, 5120")
    A(f"  s_add_u32 s{sT1}, s{sT1}, {MAREA}")
    A(f"  v_add_u32 v{vM}, s{sT1}, v{vDMA}")
    for b in range(5):
        A(f"  ds_write_b128 v{vM}, v[{CB}:{CB+3}] offset:{b*1024}")
    A(f"  s_mov_b32 s{sTHR}, 0x5f800000")
    A(f"  s_mov_b32 s{sTHRA}, 0xbf800000")
    A(f"  s_mov_b32 s{sFLA}, 0xff800000")
    A(f"  s_mov_b32 s{sCNT}, 0")
    A("  s_waitcnt vmcnt(0) lgkmcnt(0)")
    A("  s_barrier")
    for s in range(6):
        A(f"  ds_read_b128 v[{KR+4*s}:{KR+4*s+3}], v{vA} offset:{s*1024}")
    A("  s_waitcnt lgkmcnt(0)")
    for s in range(6):
        c = CB if s == 0 else S[0]
        A("  " + mfma(S[0], KR + 4 * s, Q(0, s), c).t)
    A("  s_nop 15")
    A("  s_nop 15")

    body = []
    slows = []
    idx = 0
    n = 0
    def barrier_pre():
        pr = []
        if not EXP.get("novm"):
            pr.append(other("s_waitcnt vmcnt(0)", "other"))
        if not EXP.get("nosb"):
            pr.append(other("s_barrier", "other"))
        pr.append(salu(f"s_add_u32 s{sT0}, s{sT0}, {STAGE}"))
        pr.append(salu(f"s_cmp_ge_u32 s{sT0}, {MAREA}"))
        pr.append(salu(f"s_cselect_b32 s{sT2}, {MAREA}, 0"))
        pr.append(salu(f"s_sub_u32 s{sT0}, s{sT0}, s{sT2}"))
        pr.append(salu(f"s_sub_u32 s{sT2}, {STAGE}, s{sT2}"))
        pr.append(valu(f"v_add_u32 v{vA}, s{sT2}, v{vA}", vr(vA), vr(vA)))
        pr.append(valu(f"v_add_u32 v{vB}, s{sT2}, v{vB}", vr(vB), vr(vB)))
        return pr

    for stage in range(2):
        tbl = [
            ("A", 0, 1, 3, 2, None, "VA"),
            ("A", 1, 2, 0, 3, None, None),
            ("A", 2, 3, 1, 4, None, None),
            ("A", 3, 4, 2, 0, "KB", None),
            ("A", 4, 0, 3, 1, None, None),
            ("B", 0, 1, 4, 2, None, "VB"),
            ("B", 1, 2, 0, 3, None, None),
            ("B", 2, 3, 1, 0, "KA", None),
            ("B", 3, 0, 2, 1, None, None),
        ]
        for (tile, b, qb, pb, cb, kr, vrl) in tbl:
            xs = n % 2; ys = n % 2
            qs = (n + 1) % 2; pys = (n + 1) % 2
            kre = {"KB": (vB, 0), "KA": (vA, 0), None: None}[kr]
            vre = {"VA": (vA, 0), "VB": (vB, 0), None: None}[vrl]
            pre = barrier_pre() if kr == "KA" else None
            if EXP.get("nokv"):
                kre = vre = None
            if EXP.get("nobar"):
                pre = None
            thr = sTHRA if tile == "A" else sTHR
            dma = {("B", 2): (0, 1, 2), ("B", 3): (3, 4, 5)}.get((tile, b), ())
            if EXP.get("nobar"):
                dma = ()
            sl = slot(idx, (b, xs, ys), (qb, qs), (pb, pys), cb, kre, vre, pre, thr, dma)
            if tile == "B" and b == 0:
                sl.insert(0, salu(f"s_mov_b32 s{sTHRA}, s{sTHR}"))
                sl.insert(0, salu(f"s_mov_b32 s{sFLA}, 0"))
            body += sl
            slows += fix_hazards(slow_path(idx, (b, xs, ys), sFLA if tile == "A" else None), [])
            idx += 1
            n += 1
    body.append(salu(f"s_add_u32 s{sCNT}, s{sCNT}, 1"))
    body.append(salu(f"s_cmp_lt_u32 s{sCNT}, 18"))
    body.append(other("s_cbranch_scc1 Lloop", "br"))
    b1, carry = insert_lgkm(body, [])
    b2, carry2 = insert_lgkm(body, carry)
    b2 = fix_hazards(b2, b1[-40:])
    A(f"  s_mov_b32 s{sT0}, 0")
    A("  s_waitcnt lgkmcnt(0)")
    if opts.get("prof"):
        A("  s_memtime s[36:37]")
        A("  s_waitcnt lgkmcnt(0)")
    A("Lloop:")
    out += text(b2)
    if opts.get("prof"):
        A("  s_memtime s[38:39]")
        A("  s_load_dwordx2 s[40:41], s[0:1], 40")
        A("  s_waitcnt lgkmcnt(0)")
        A("  s_mov_b32 s42, 256")
        A("  s_mov_b32 s43, 0x20000")
        A("  s_sub_u32 s38, s38, s36")
        A("  s_sub_u32 s39, s36, s44")
    last_ys = (n - 1) % 2
    A("  s_waitcnt lgkmcnt(0)")
    A("  s_nop 7")
    for d in range(3):
        for t in range(2):
            A("  " + mfma(O(3, d), VR + 4 * (2 * d + t), P[last_ys] + 4 * t, O(3, d), dk="a", ck="a").t)
    A("  s_nop 15")
    A("  s_nop 15")
    SC = S[0]
    A(f"  v_lshrrev_b32 v0, 4, v{vDMA}")
    A(f"  v_and_b32 v{vTMP}, 31, v0")
    A(f"  v_mul_u32_u24 v{vTMP}, 192, v{vTMP}")
    A(f"  v_lshrrev_b32 v1, 5, v0")
    A(f"  v_lshl_add_u32 v{vTMP}, v1, 4, v{vTMP}")
    def finalize(b, lreg, src_is_agpr=True, obase=None, tmpbase=None):
        A(f"  v_mov_b32 v{T[1]}, v{lreg}")
        A(f"  v_mov_b32 v{T[0]}, v{lreg}")
        A("  s_nop 1")
        A(f"  v_permlane32_swap_b32 v{T[0]}, v{T[1]}")
        A("  s_nop 1")
        A(f"  v_add_f32 v{T[0]}, v{T[0]}, v{T[1]}")
        A(f"  v_rcp_f32 v{T[0]}, v{T[0]}")
        A("  s_nop 1")
        tb = tmpbase
        for d in range(3):
            for gp in range(2):
                k = (d * 2 + gp) * 4
                for gg in range(2):
                    g = 2 * gp + gg
                    for e in range(4):
                        r = 16 * d + 4 * g + e
                        dst = T[2 + e]
                        if src_is_agpr:
                            A(f"  v_accvgpr_read_b32 v{dst}, a{O(b,0)+r}")
                        else:
                            A(f"  v_mov_b32 v{dst}, v{obase+r}")
                    for e in range(4):
                        A(f"  v_mul_f32 v{T[2+e]}, v{T[2+e]}, v{T[0]}")
                    A(f"  v_cvt_pk_bf16_f32 v{tb+k+2*gg}, v{T[2]}, v{T[3]}")
                    A(f"  v_cvt_pk_bf16_f32 v{tb+k+2*gg+1}, v{T[4]}, v{T[5]}")
                A("  s_nop 1")
                A(f"  v_permlane32_swap_b32 v{tb+k}, v{tb+k+2}")
                A(f"  v_permlane32_swap_b32 v{tb+k+1}, v{tb+k+3}")
                A(f"  buffer_store_dwordx4 v[{tb+k}:{tb+k+3}], v{vTMP}, s[12:15], s{sT1} offen offset:{64*d+32*gp}")
    for b in range(4):
        A(f"  s_lshl_b32 s{sT1}, s{sW}, 2")
        A(f"  s_add_u32 s{sT1}, s{sT1}, {b}")
        A(f"  s_mul_i32 s{sT1}, s{sT1}, 6144")
        A(f"  s_add_u32 s{sT1}, s{sT1}, s{sQB}")
        finalize(b, Lr[b], tmpbase=QB + 24 * b)
    b = 4
    OV = SC + 64
    for r in range(48):
        A(f"  v_accvgpr_read_b32 v{OV+r}, a{O(b,0)+r}")
    A(f"  s_lshr_b32 s{sT1}, s{sW}, 1")
    A(f"  s_mul_i32 s{sT1}, s{sT1}, 16384")
    A(f"  v_add_u32 v{T[2]}, s{sT1}, v{vDMA}")
    A("  s_barrier")
    A(f"  s_cmp_eq_u32 s{sPAR}, 0")
    A("  s_cbranch_scc1 Lmerge_even")
    for qd in range(12):
        A(f"  ds_write_b128 v{T[2]}, v[{OV+4*qd}:{OV+4*qd+3}] offset:{qd*1024}")
    A(f"  v_mov_b32 v{T[4]}, v{Lr[b]}")
    A(f"  v_mov_b32 v{T[5]}, v{NM[b]}")
    A(f"  v_mov_b32 v{T[6]}, 0")
    A(f"  v_mov_b32 v{T[7]}, 0")
    A(f"  ds_write_b128 v{T[2]}, v[{T[4]}:{T[7]}] offset:{12*1024}")
    A("  s_waitcnt lgkmcnt(0)")
    A("  s_barrier")
    A("  s_branch Lattn_end")
    A("Lmerge_even:")
    A("  s_barrier")
    PV_ = SC
    for qd in range(12):
        A(f"  ds_read_b128 v[{PV_+4*qd}:{PV_+4*qd+3}], v{T[2]} offset:{qd*1024}")
    A(f"  ds_read_b128 v[{T[4]}:{T[7]}], v{T[2]} offset:{12*1024}")
    A("  s_waitcnt lgkmcnt(0)")
    A(f"  v_min_f32 v{T[6]}, v{NM[b]}, v{T[5]}")
    A(f"  v_sub_f32 v{T[0]}, v{T[6]}, v{NM[b]}")
    A(f"  v_sub_f32 v{T[1]}, v{T[6]}, v{T[5]}")
    A(f"  v_exp_f32 v{T[0]}, v{T[0]}")
    A(f"  v_exp_f32 v{T[1]}, v{T[1]}")
    A("  s_nop 1")
    for r in range(48):
        A(f"  v_mul_f32 v{OV+r}, v{OV+r}, v{T[0]}")
        A(f"  v_fmac_f32 v{OV+r}, v{PV_+r}, v{T[1]}")
    A(f"  v_mul_f32 v{Lr[b]}, v{Lr[b]}, v{T[0]}")
    A(f"  v_fmac_f32 v{Lr[b]}, v{T[4]}, v{T[1]}")
    A(f"  s_lshr_b32 s{sT1}, s{sW}, 1")
    A(f"  s_add_u32 s{sT1}, s{sT1}, 16")
    A(f"  s_mul_i32 s{sT1}, s{sT1}, 6144")
    A(f"  s_add_u32 s{sT1}, s{sT1}, s{sQB}")
    finalize(b, Lr[b], src_is_agpr=False, obase=OV, tmpbase=QB + 96)
    A("Lattn_end:")
    if opts.get("prof"):
        A("  s_cmp_ge_u32 s2, 1")
        A("  s_cbranch_scc1 Lnoprof")
        A("  s_memtime s[46:47]")
        A("  s_waitcnt lgkmcnt(0)")
        A("  s_sub_u32 s46, s46, s44")
        A(f"  v_mov_b32 v{T[0]}, s38")
        A(f"  v_mov_b32 v{T[1]}, s39")
        A(f"  v_mov_b32 v{T[2]}, s46")
        A(f"  v_mov_b32 v{T[3]}, s{sW}")
        A(f"  v_lshlrev_b32 v{T[3]}, 4, v{T[3]}")
        A(f"  buffer_store_dwordx4 v[{T[0]}:{T[3]}], v{T[3]}, s[40:43], 0 offen")
        A("Lnoprof:")
    A("Lattn_exit:")
    A("  s_endpgm")
    out += text(slows)
    return "\n".join(out) + kd("k_attn_kernel", vgpr=512, sgpr=48, accum=256)
```
